```python
import torch

def _softmax(x, axis=-1):
    return torch.softmax(x, dim=axis)
def _gelu(x):
    return torch.nn.functional.gelu(x, approximate="tanh")
def _silu(x):
    return torch.nn.functional.silu(x)
def _sigmoid(x):
    return torch.sigmoid(x)
def _layernorm(x, axis=-1, eps=1e-5):
    m = x.mean(dim=axis, keepdim=True)
    v = x.var(dim=axis, keepdim=True, unbiased=False)
    return (x - m) / torch.sqrt(v + eps)
def _scatter_add(tgt, idx, src, axis=0):
    return tgt.clone().index_add_(axis, idx, src)
def _segment_sum(src, seg, n):
    out = torch.zeros((n,) + src.shape[1:], dtype=src.dtype)
    return out.index_add_(0, seg, src)
def _pad(x, pw):
    flat = tuple(v for pair in reversed(pw) for v in pair)
    return torch.nn.functional.pad(x, flat)

kernel_name = 'gated_mix__sliding_block_cached__geglu_ffn__decode'

def setup_inputs():

    _w = (lambda a: (lambda t: t.to(torch.bfloat16) if t.is_floating_point() else t)(torch.as_tensor(a)))
    def _A_setup():
        B, Sq, D = 8, 1, 640
        Hq, Hkv, Sk, Dh = 32, 32, 4096, 192
        assert Hq % Hkv == 0, (Hq, Hkv)
        return {
            "x": _w((lambda *s: torch.randn(*s, dtype=torch.bfloat16) * 0.05)(B, Sq, D)),
            "k_cache": _w((lambda *s: torch.randn(*s, dtype=torch.bfloat16) * 6.4)(B, Hkv, Sk, Dh)),
            "v_cache": _w((lambda *s: torch.randn(*s, dtype=torch.bfloat16) * 0.2)(B, Hkv, Sk, Dh)),
            "wq": _w((lambda *s: torch.randn(*s, dtype=torch.bfloat16) * 6.4)(D, Hq * Dh) * (D ** -0.5)),
            "wo": _w((lambda *s: torch.randn(*s, dtype=torch.bfloat16) * 0.2)(Hq * Dh, D) * ((Hq * Dh) ** -0.5)),
        }
    _A_in = _A_setup()

    def _B_setup():
        B, S, D, F = 8, 1, 640, 1536
        return {
            "x": _w((lambda *s: torch.randn(*s, dtype=torch.bfloat16) * 0.05)(B, S, D)),
            "w_gate": _w((lambda *s: torch.randn(*s, dtype=torch.bfloat16) * 0.05)(D, F)),
            "w_up": _w((lambda *s: torch.randn(*s, dtype=torch.bfloat16) * 0.05)(D, F)),
            "w_down": _w((lambda *s: torch.randn(*s, dtype=torch.bfloat16) * 0.05)(F, D)),
        }
    _B_in = _B_setup()

    return {
        "A_x": _A_in["x"],
        "A_k_cache": _A_in["k_cache"],
        "A_v_cache": _A_in["v_cache"],
        "A_wq": _A_in["wq"],
        "A_wo": _A_in["wo"],
        "B_x": _B_in["x"],
        "B_w_gate": _B_in["w_gate"],
        "B_w_up": _B_in["w_up"],
        "B_w_down": _B_in["w_down"],
        "gate_w": _w((lambda *s: torch.randn(*s, dtype=torch.bfloat16) * 0.05)(640) * 16.0),
    }

def reference(A_x, A_k_cache, A_v_cache, A_wq, A_wo, B_x, B_w_gate, B_w_up, B_w_down, gate_w):
    def _A_ref(x, k_cache, v_cache, wq, wo):
        B, Sq, D = x.shape
        Hq, Dh = 32, 192
        Hkv, Sk = k_cache.shape[1], k_cache.shape[2]
        W = min(4096, max(256, Sk // 4))
        rep = Hq // Hkv
        q = (lambda x, *d: x.permute(*d))((x @ wq).reshape(B, Sq, Hq, Dh), 0, 2, 1, 3)
        k = (lambda x, n, axis: torch.repeat_interleave(x, n, dim=axis))(k_cache[:, :, Sk - W:, :], rep, axis=1)
        v = (lambda x, n, axis: torch.repeat_interleave(x, n, dim=axis))(v_cache[:, :, Sk - W:, :], rep, axis=1)
        scores = torch.einsum("bhqd,bhkd->bhqk", q, k) * (Dh ** -0.5)
        p = _softmax(scores, axis=-1)
        o = torch.einsum("bhqk,bhkd->bhqd", p, v)
        return (lambda x, *d: x.permute(*d))(o, 0, 2, 1, 3).reshape(B, Sq, Hq * Dh) @ wo

    def _B_ref(x, w_gate, w_up, w_down):
        return (_gelu(x @ w_gate) * (x @ w_up)) @ w_down

    x = A_x
    g = _sigmoid((x * gate_w).sum(-1, keepdims=True))
    a = _A_ref(x, A_k_cache, A_v_cache, A_wq, A_wo)
    b = _B_ref(x, B_w_gate, B_w_up, B_w_down)
    return g * a + (1 - g) * b
```

```python
import re

TRANS = ("v_exp_f32", "v_log_f32", "v_rcp_f32", "v_rsq_f32", "v_sqrt_f32", "v_sin_f32", "v_cos_f32")


def _regs(tok):
    tok = tok.strip()
    if tok.startswith("-"):
        tok = tok[1:]
    m = re.fullmatch(r"abs\((.*)\)", tok)
    if m:
        tok = m.group(1)
    m = re.fullmatch(r"([vs])(\d+)", tok)
    if m:
        return {(m.group(1), int(m.group(2)))}
    m = re.fullmatch(r"([vs])\[(\d+):(\d+)\]", tok)
    if m:
        return {(m.group(1), i) for i in range(int(m.group(2)), int(m.group(3)) + 1)}
    if tok in ("vcc", "vcc_lo", "vcc_hi"):
        return {("vcc", 0)}
    if tok == "exec":
        return {("exec", 0)}
    return set()


class Ins:
    def __init__(self, text):
        self.text = text
        t = text.split(";")[0].strip()
        self.is_label = t.endswith(":")
        self.mn = ""
        self.ops = []
        self.w = set()
        self.r = set()
        self.cls = "other"
        self.dpp = False
        self.states = 1
        if not t or self.is_label or t.startswith("."):
            self.cls = "meta"
            self.states = 0
            return
        parts = t.split(None, 1)
        self.mn = parts[0]
        rest = parts[1] if len(parts) > 1 else ""
        ops, depth, cur = [], 0, ""
        for ch in rest:
            if ch == "[":
                depth += 1
            if ch == "]":
                depth -= 1
            if ch == "," and depth == 0:
                ops.append(cur.strip())
                cur = ""
            else:
                cur += ch
        if cur.strip():
            ops.append(cur.strip())
        regops = []
        for o in ops:
            regops.append(o.split()[0] if o.split() else o)
        self.ops = regops
        mn = self.mn
        self.dpp = ("_dpp" in mn) or ("row_" in rest) or ("quad_perm" in rest)
        if mn == "s_nop":
            self.states = int(regops[0], 0) + 1
            return
        if mn.startswith("s_waitcnt") or mn in ("s_barrier", "s_endpgm") or mn.startswith("s_branch") or mn.startswith("s_cbranch") or mn.startswith("s_setprio") or mn.startswith("s_sleep"):
            self.cls = "ctl"
            return
        if mn.startswith("s_load") or mn.startswith("s_buffer_load"):
            self.cls = "smem"
            self.w |= _regs(regops[0])
            for o in regops[1:]:
                self.r |= _regs(o)
            return
        if mn.startswith("s_"):
            self.cls = "salu"
            if mn.startswith("s_cmp"):
                for o in regops:
                    self.r |= _regs(o)
            else:
                self.w |= _regs(regops[0])
                for o in regops[1:]:
                    self.r |= _regs(o)
                if "saveexec" in mn:
                    self.w.add(("exec", 0))
            return
        if mn.startswith("v_"):
            if mn.startswith("v_mfma"):
                self.cls = "mfma"
            elif mn.startswith("v_dot2"):
                self.cls = "dot"
            else:
                self.cls = "valu"
            if mn.startswith("v_permlane"):
                self.w |= _regs(regops[0]) | _regs(regops[1])
                self.r |= _regs(regops[0]) | _regs(regops[1])
                return
            self.w |= _regs(regops[0])
            srcs = regops[1:]
            if mn.startswith("v_add_co") or mn.startswith("v_sub_co") or mn.startswith("v_addc_co") or mn.startswith("v_subb_co"):
                self.w |= _regs(regops[1])
                srcs = regops[2:]
            for o in srcs:
                self.r |= _regs(o)
            if mn.startswith("v_fmac") or mn.startswith("v_dot2c") or mn.startswith("v_pk_fmac"):
                self.r |= _regs(regops[0])
            if mn.startswith("v_cndmask") and len(regops) == 3:
                self.r.add(("vcc", 0))
            if self.dpp and "row_mask" in rest and not re.search(r"row_mask:0xf", rest):
                self.r |= _regs(regops[0])
            return
        if mn.startswith("buffer_load") or mn.startswith("global_load"):
            self.cls = "vmem_ld"
            self.w |= _regs(regops[0])
            for o in regops[1:]:
                self.r |= _regs(o)
            return
        if mn.startswith("buffer_store") or mn.startswith("global_store") or mn.startswith("buffer_atomic") or mn.startswith("global_atomic"):
            self.cls = "vmem_st"
            for o in regops:
                self.r |= _regs(o)
            self.wide = mn.endswith("x4") or mn.endswith("x3")
            self.data = _regs(regops[0])
            return
        if mn.startswith("ds_read") or mn.startswith("ds_bpermute") or mn.startswith("ds_swizzle") or mn.startswith("ds_permute"):
            self.cls = "ds_rd"
            self.w |= _regs(regops[0])
            for o in regops[1:]:
                self.r |= _regs(o)
            return
        if mn.startswith("ds_write") or mn.startswith("ds_add"):
            self.cls = "ds_wr"
            for o in regops:
                self.r |= _regs(o)
            return
        if mn.startswith("buffer_wbl2") or mn.startswith("buffer_inv"):
            self.cls = "ctl"
            return
        raise ValueError("unknown instruction class: " + text)

    @property
    def is_valu(self):
        return self.cls in ("valu", "dot", "mfma")


def _need(p, c):
    n = 0
    pv = {x for x in p.w if x[0] == "v"}
    ps = {x for x in p.w if x[0] in ("s", "vcc")}
    cr = c.r
    cw = c.w
    if p.cls in ("valu", "dot"):
        if c.cls in ("valu", "dot", "mfma"):
            if (c.mn.startswith("v_readlane") or c.mn.startswith("v_readfirstlane")) and pv & cr:
                n = max(n, 1)
            if ps & cr:
                n = max(n, 4 if (c.mn.startswith("v_readlane") or c.mn.startswith("v_writelane")) else 2)
            if c.dpp and pv & cr:
                n = max(n, 2)
            if c.mn.startswith("v_permlane") and pv & cr:
                n = max(n, 2)
            if p.mn in TRANS and c.mn not in TRANS and pv & (cr | cw):
                n = max(n, 1)
            if c.cls == "mfma" and pv & cr:
                n = max(n, 2)
        if c.cls in ("vmem_ld", "vmem_st") and ps & cr:
            n = max(n, 5)
        if p.cls == "dot":
            if c.cls == "dot" and c.mn == p.mn:
                srcab = set()
                for o in c.ops[1:3]:
                    srcab |= _regs(o)
                if pv & srcab:
                    n = max(n, 3)
            elif pv & (cr | cw):
                n = max(n, 3)
    if p.cls == "mfma":
        npass = 4 if "16x16x32" in p.mn or "16x16x16" in p.mn else 8
        d = pv
        if c.cls == "mfma":
            csrc = _regs(c.ops[3]) if len(c.ops) > 3 else set()
            ab = _regs(c.ops[1]) | _regs(c.ops[2])
            if d & ab:
                n = max(n, {4: 8, 8: 12}[npass])
            if d & csrc and not (csrc == d and c.mn == p.mn):
                n = max(n, {4: 6, 8: 10}[npass])
            if d & c.w and not (c.w == d and csrc == d):
                n = max(n, {4: 8, 8: 12}[npass])
        elif d & (cr | cw):
            n = max(n, {4: 8, 8: 12}[npass])
        psrc = _regs(p.ops[3]) if len(p.ops) > 3 else set()
        if c.cls in ("valu", "dot") and psrc & cw:
            n = max(n, {4: 3, 8: 7}[npass])
    if p.cls == "vmem_st" and getattr(p, "wide", False):
        if p.data & cw:
            n = max(n, 2 if c.is_valu else 1)
    return n


def pad_hazards(lines):
    out = []
    for text in lines:
        ins = Ins(text)
        if ins.cls == "meta":
            out.append(ins)
            continue
        need_extra = 0
        dist = 0
        for p in reversed(out):
            if p.cls == "meta":
                if p.is_label:
                    break
                continue
            req = _need(p, ins)
            if req > dist:
                need_extra = max(need_extra, req - dist)
            dist += p.states
            if dist >= 24:
                break
        while need_extra > 0:
            k = min(need_extra, 16)
            out.append(Ins("  s_nop %d" % (k - 1)))
            need_extra -= k
        out.append(ins)
    return [i.text for i in out]


class Asm:
    def __init__(self):
        self.lines = []
        self.vmq = []

    def e(self, s):
        self.lines.append("  " + s)

    def raw(self, s):
        self.lines.append(s)

    def label(self, name):
        self.lines.append(name + ":")

    def comment(self, s):
        self.lines.append("  ; " + s)

    def vm(self, s, tag):
        self.e(s)
        self.vmq.append(tag)

    def vm_wait(self, tag):
        idx = -1
        for i, t in enumerate(self.vmq):
            if t == tag:
                idx = i
        if idx < 0:
            return
        n = len(self.vmq) - 1 - idx
        assert n <= 63
        self.e("s_waitcnt vmcnt(%d)" % n)
        self.vmq = self.vmq[idx + 1:]

    def vm_wait_all(self):
        self.e("s_waitcnt vmcnt(0)")
        self.vmq = []

    def text(self):
        return "\n".join(pad_hazards(self.lines)) + "\n"


def v(a, n=1):
    return "v%d" % a if n == 1 else "v[%d:%d]" % (a, a + n - 1)


def s(a, n=1):
    return "s%d" % a if n == 1 else "s[%d:%d]" % (a, a + n - 1)
```

```python
import sys, struct
sys.path.insert(0, "dev")
from asmlib import Asm, v, s

NAME = "gated_mix__sliding_block_cached__geglu_ffn__decode"
DEBUG = "--debug" in sys.argv

def f32(x):
    return "0x%08x" % struct.unpack("<I", struct.pack("<f", x))[0]

SCALE = 192 ** -0.5
LOG2E = 1.4426950408889634

SRD_K, SRD_V, SRD_WQ, SRD_WG, SRD_WU, SRD_WO, SRD_WD, SRD_WS, SRD_X = 24, 28, 32, 36, 40, 44, 48, 52, 56
S_W, S_B, S_H, S_T = 60, 61, 62, 63
S_XP = 64
S_RUN = 84
S_SELLO, S_SELHI, S_SCALE, S_LOG2E, S_T1, S_T2 = 85, 86, 87, 88, 89, 90
S_C = 91

L_QP = 0
L_OP = 0
L_GP = 24576
L_UP = 27648
L_X = 30720
L_Q = 34816
L_HID = 35328
L_ML = 35584
L_OBF = 35840
L_RED = 36864
LDS_BYTES = L_RED + 81920

WS_PA = 0
WS_PB = 655360
WS_DBG = 2 << 20


def srd(a, base, plo, phi, off_lo=None, size=0, size_s=None):
    if off_lo is None:
        a.e(f"s_mov_b32 s{base}, s{plo}")
        a.e(f"s_and_b32 s{base+1}, s{phi}, 0xffff")
    else:
        a.e(f"s_add_u32 s{base}, s{plo}, s{off_lo}")
        a.e(f"s_addc_u32 s{base+1}, s{phi}, 0")
        a.e(f"s_and_b32 s{base+1}, s{base+1}, 0xffff")
    if size_s is None:
        a.e(f"s_mov_b32 s{base+2}, {size}")
    else:
        a.e(f"s_mov_b32 s{base+2}, s{size_s}")
    a.e(f"s_mov_b32 s{base+3}, 0x00020000")


def bf16_round(a, dst, src):
    a.e(f"v_cvt_pk_bf16_f32 v{dst}, v{src}, v{src}")
    a.e(f"v_lshlrev_b32 v{dst}, 16, v{dst}")


def kernel_a():
    a = Asm()
    T = list(range(1, 9))
    V_KOFF, V_VOFF, V_M, V_L = 9, 10, 14, 15
    ACC = 16
    V_S = 24
    V_PK = 28
    V_D = 32
    ACC2 = 36
    V_Q = 48
    POOL = 72

    a.label(f"{NAME}_kernel")
    a.e("s_cmp_ge_u32 s2, 256")
    a.e("s_cbranch_scc1 L_a_end")
    a.e("s_load_dwordx4 s[4:7], s[0:1], 0")
    a.e("s_load_dwordx4 s[8:11], s[0:1], 16")
    a.e("s_load_dwordx4 s[12:15], s[0:1], 32")
    a.e("s_load_dwordx4 s[16:19], s[0:1], 48")
    a.e("s_load_dwordx2 s[20:21], s[0:1], 64")
    a.e("s_load_dwordx2 s[22:23], s[0:1], 96")
    a.e("v_lshrrev_b32 v1, 6, v0")
    a.e("v_and_b32 v0, 63, v0")
    a.e(f"v_readfirstlane_b32 s{S_W}, v1")
    a.e(f"s_lshr_b32 s{S_B}, s2, 5")
    a.e(f"s_and_b32 s{S_H}, s2, 31")
    a.e(f"s_mov_b32 s{S_SELLO}, 0x05040100")
    a.e(f"s_mov_b32 s{S_SELHI}, 0x07060302")
    a.e(f"s_mov_b32 s{S_SCALE}, {f32(SCALE)}")
    a.e(f"s_mov_b32 s{S_LOG2E}, {f32(LOG2E)}")
    for k in range(1, 8):
        a.e(f"s_mov_b32 s{S_C+k-1}, {3072*k}")
    a.e("s_waitcnt lgkmcnt(0)")
    a.e(f"s_mul_i32 s{S_T}, s2, 1572864")
    a.e(f"s_add_u32 s{S_T}, s{S_T}, 1179648")
    srd(a, SRD_K, 6, 7, S_T, 393216)
    srd(a, SRD_V, 8, 9, S_T, 393216)
    a.e(f"s_mul_i32 s{S_T}, s{S_H}, 384")
    a.e(f"s_sub_u32 s{S_T1}, 7864320, s{S_T}")
    srd(a, SRD_WQ, 10, 11, S_T, size_s=S_T1)
    a.e(f"s_mul_i32 s{S_T}, s{S_H}, 96")
    a.e(f"s_sub_u32 s{S_T1}, 1966080, s{S_T}")
    srd(a, SRD_WG, 16, 17, S_T, size_s=S_T1)
    srd(a, SRD_WU, 18, 19, S_T, size_s=S_T1)
    a.e(f"s_mul_i32 s{S_T}, s{S_H}, 245760")
    srd(a, SRD_WO, 12, 13, S_T, 245760)
    a.e(f"s_mul_i32 s{S_T}, s{S_H}, 61440")
    srd(a, SRD_WD, 20, 21, S_T, 61440)
    srd(a, SRD_WS, 22, 23, None, 8 << 20)
    srd(a, SRD_X, 4, 5, None, 10240)
    a.e(f"s_mul_i32 s{S_T}, s{S_B}, 1280")
    a.e(f"s_mul_i32 s{S_T1}, s{S_W}, 80")
    a.e(f"s_add_u32 s{S_T}, s{S_T}, s{S_T1}")
    a.e(f"s_add_u32 s4, s4, s{S_T}")
    a.e("s_addc_u32 s5, s5, 0")
    for j in range(5):
        a.e(f"s_load_dwordx4 s[{S_XP+4*j}:{S_XP+4*j+3}], s[4:5], {16*j}")
    a.e(f"s_lshl_b32 s{S_T}, s{S_W}, 6")
    a.e(f"v_add_u32 v1, s{S_T}, v0")
    a.e(f"s_mul_i32 s{S_T1}, s{S_B}, 1280")
    a.e("v_lshlrev_b32 v2, 1, v1")
    a.e(f"v_add_u32 v2, s{S_T1}, v2")
    a.vm(f"buffer_load_ushort v3, v2, s[{SRD_X}:{SRD_X+3}], 0 offen", "x")
    a.e("v_lshlrev_b32 v1, 2, v1")
    a.vm_wait("x")
    a.e("v_lshlrev_b32 v3, 16, v3")
    a.e(f"ds_write_b32 v1, v3 offset:{L_X}")

    a.e("v_and_b32 v1, 15, v0")
    a.e("v_mul_u32_u24 v1, 384, v1")
    a.e("v_lshrrev_b32 v2, 4, v0")
    a.e("v_lshlrev_b32 v2, 4, v2")
    a.e("v_add_u32 v1, v1, v2")
    a.e(f"s_mul_i32 s{S_T}, s{S_W}, 24576")
    a.e(f"v_add_u32 v{V_KOFF}, s{S_T}, v1")
    a.e("v_and_b32 v1, 31, v0")
    a.e("v_mul_u32_u24 v1, 12, v1")
    a.e("v_lshrrev_b32 v2, 5, v0")
    a.e("v_mul_u32_u24 v2, 1536, v2")
    a.e("v_add_u32 v1, v1, v2")
    a.e(f"v_add_u32 v{V_VOFF}, s{S_T}, v1")

    def wq_voff(dst):
        a.e(f"v_and_b32 v{dst}, 31, v0")
        a.e(f"v_mul_u32_u24 v{dst}, 12, v{dst}")
        a.e("v_lshrrev_b32 v2, 5, v0")
        a.e("v_mul_u32_u24 v2, 245760, v2")
        a.e(f"v_add_u32 v{dst}, v{dst}, v2")
        a.e(f"s_mul_i32 s{S_T}, s{S_W}, 491520")
        a.e(f"v_add_u32 v{dst}, s{S_T}, v{dst}")

    V_WQOFF = 13
    wq_voff(V_WQOFF)
    a.e(f"s_waitcnt lgkmcnt(0)")
    a.e("s_mov_b32 vcc_lo, 0")
    a.e("s_mov_b32 vcc_hi, -1")
    for batch in range(2):
        regs = [POOL + 4 * i for i in range(10)]
        for i in range(10):
            row = batch * 10 + i
            a.e(f"s_mov_b32 s{S_RUN}, {row*12288}")
            a.vm(f"buffer_load_dwordx3 {v(regs[i],3)}, v{V_WQOFF}, s[{SRD_WQ}:{SRD_WQ+3}], s{S_RUN} offen", ("wq", row))
        for pp in range(5):
            p = batch * 5 + pp
            a.vm_wait(("wq", 2 * p + 1))
            a.e(f"v_mov_b32 v3, s{S_XP+10+p}")
            a.e(f"v_mov_b32 v8, s{S_XP+p}")
            a.e(f"v_cndmask_b32 v3, v8, v3, vcc")
            for c in range(3):
                A, B = regs[2 * pp] + c, regs[2 * pp + 1] + c
                t0, t1 = (4, 5) if c % 2 == 0 else (6, 7)
                a.e(f"v_perm_b32 v{t0}, v{B}, v{A}, s{S_SELLO}")
                a.e(f"v_perm_b32 v{t1}, v{B}, v{A}, s{S_SELHI}")
                c0 = "0" if p == 0 else f"v{ACC+2*c}"
                c1 = "0" if p == 0 else f"v{ACC+2*c+1}"
                a.e(f"v_dot2_f32_bf16 v{ACC+2*c}, v{t0}, v3, {c0}")
                a.e(f"v_dot2_f32_bf16 v{ACC+2*c+1}, v{t1}, v3, {c1}")
    a.e("v_and_b32 v1, 31, v0")
    a.e("v_mul_u32_u24 v1, 24, v1")
    a.e("v_lshrrev_b32 v2, 5, v0")
    a.e("v_mul_u32_u24 v2, 768, v2")
    a.e("v_add_u32 v1, v1, v2")
    a.e(f"s_mul_i32 s{S_T}, s{S_W}, 1536")
    a.e(f"v_add_u32 v1, s{S_T}, v1")
    for c in range(3):
        a.e(f"ds_write_b64 v1, {v(ACC+2*c,2)} offset:{L_QP+8*c}")

    V_GUOFF, V_XOFF = 13, 14
    a.e(f"v_and_b32 v{V_GUOFF}, 7, v0")
    a.e(f"v_mul_u32_u24 v{V_XOFF}, 20, v{V_GUOFF}")
    a.e(f"v_mul_u32_u24 v{V_GUOFF}, 15360, v{V_GUOFF}")
    a.e("v_lshrrev_b32 v2, 3, v0")
    a.e("v_mul_u32_u24 v2, 12, v2")
    a.e(f"v_add_u32 v{V_GUOFF}, v{V_GUOFF}, v2")
    a.e(f"s_mul_i32 s{S_T}, s{S_W}, 122880")
    a.e(f"v_add_u32 v{V_GUOFF}, s{S_T}, v{V_GUOFF}")
    a.e(f"s_mul_i32 s{S_T}, s{S_W}, 160")
    a.e(f"v_add_u32 v{V_XOFF}, s{S_T}, v{V_XOFF}")
    gregs = [POOL + 4 * i for i in range(5)]
    uregs = [POOL + 20 + 4 * i for i in range(5)]
    for i in range(5):
        so = "0" if i == 0 else f"s{S_C+i-1}"
        a.vm(f"buffer_load_dwordx3 {v(gregs[i],3)}, v{V_GUOFF}, s[{SRD_WG}:{SRD_WG+3}], {so} offen", ("g", i))
        a.vm(f"buffer_load_dwordx3 {v(uregs[i],3)}, v{V_GUOFF}, s[{SRD_WU}:{SRD_WU+3}], {so} offen", ("u", i))
    a.e("s_waitcnt lgkmcnt(0)")
    a.e("s_barrier")
    for c in range(12):
        a.e(f"v_mov_b32 v{ACC2+c}, 0")
    for i in range(5):
        a.e(f"ds_read_b32 v3, v{V_XOFF} offset:{L_X+4*i}")
        a.vm_wait(("u", i))
        a.e("s_waitcnt lgkmcnt(0)")
        for m, regs in ((0, gregs), (1, uregs)):
            for c in range(3):
                w = regs[i] + c
                a.e(f"v_lshlrev_b32 v4, 16, v{w}")
                a.e(f"v_and_b32 v5, 0xffff0000, v{w}")
                a.e(f"v_fmac_f32 v{ACC2+6*m+2*c}, v4, v3")
                a.e(f"v_fmac_f32 v{ACC2+6*m+2*c+1}, v5, v3")
    for mode in ("quad_perm:[1,0,3,2]", "quad_perm:[2,3,0,1]", "row_half_mirror"):
        for c in range(12):
            a.e(f"v_add_f32_dpp v{ACC2+c}, v{ACC2+c}, v{ACC2+c} {mode} row_mask:0xf bank_mask:0xf")
    a.e("v_lshrrev_b32 v1, 3, v0")
    a.e("v_mul_u32_u24 v1, 24, v1")
    a.e(f"s_mul_i32 s{S_T}, s{S_W}, 192")
    a.e(f"v_add_u32 v1, s{S_T}, v1")
    for c in range(3):
        a.e(f"ds_write_b64 v1, {v(ACC2+2*c,2)} offset:{L_GP+8*c}")
        a.e(f"ds_write_b64 v1, {v(ACC2+6+2*c,2)} offset:{L_UP+8*c}")
    a.e("s_waitcnt lgkmcnt(0)")
    a.e("s_barrier")

    a.e(f"s_cmp_ge_u32 s{S_W}, 3")
    a.e("s_cbranch_scc1 L_a_finq_skip")
    a.e(f"s_lshl_b32 s{S_T}, s{S_W}, 8")
    a.e("v_lshlrev_b32 v1, 2, v0")
    a.e(f"v_add_u32 v1, s{S_T}, v1")
    for k in range(32):
        a.e(f"ds_read_b32 v{POOL+k}, v1 offset:{L_QP+768*k}")
    a.e("s_waitcnt lgkmcnt(0)")
    for k in range(1, 32):
        a.e(f"v_add_f32 v{POOL}, v{POOL}, v{POOL+k}")
    a.e(f"v_cvt_pk_bf16_f32 v2, v{POOL}, v{POOL}")
    a.e("v_lshrrev_b32 v1, 1, v1")
    a.e(f"ds_write_b16 v1, v2 offset:{L_Q}")
    if DEBUG:
        a.e(f"s_mul_i32 s{S_T}, s2, 384")
        a.e(f"s_add_u32 s{S_T}, s{S_T}, {WS_DBG}")
        a.e(f"v_add_u32 v1, s{S_T}, v1")
        a.vm(f"buffer_store_short v2, v1, s[{SRD_WS}:{SRD_WS+3}], 0 offen offset:0", "dbg")
        a.vm_wait_all()
    a.e("s_branch L_a_finq_done")
    a.label("L_a_finq_skip")
    a.e(f"s_cmp_lg_u32 s{S_W}, 3")
    a.e("s_cbranch_scc1 L_a_finq_done")
    a.e("v_min_u32 v1, 47, v0")
    a.e("v_lshlrev_b32 v1, 2, v1")
    for k in range(16):
        a.e(f"ds_read_b32 v{POOL+k}, v1 offset:{L_GP+192*k}")
        a.e(f"ds_read_b32 v{POOL+16+k}, v1 offset:{L_UP+192*k}")
    a.e("s_waitcnt lgkmcnt(0)")
    for k in range(1, 16):
        a.e(f"v_add_f32 v{POOL}, v{POOL}, v{POOL+k}")
        a.e(f"v_add_f32 v{POOL+16}, v{POOL+16}, v{POOL+16+k}")
    bf16_round(a, 2, POOL)
    bf16_round(a, 3, POOL + 16)
    a.e("v_mul_f32 v4, v2, v2")
    a.e(f"v_mov_b32 v5, {f32(0.044715)}")
    a.e("v_fma_f32 v4, v4, v5, 1.0")
    a.e("v_mul_f32 v4, v4, v2")
    a.e(f"v_mul_f32 v4, {f32(2*0.7978845608028654*LOG2E)}, v4")
    a.e("v_exp_f32 v4, v4")
    a.e("v_add_f32 v4, 1.0, v4")
    a.e("v_rcp_f32 v4, v4")
    a.e("v_fma_f32 v4, v4, -2.0, 1.0")
    a.e("v_add_f32 v4, 1.0, v4")
    a.e("v_mul_f32 v4, 0.5, v4")
    a.e("v_mul_f32 v4, v4, v2")
    bf16_round(a, 4, 4)
    a.e("v_mul_f32 v4, v4, v3")
    bf16_round(a, 4, 4)
    a.e(f"ds_write_b32 v1, v4 offset:{L_HID}")
    if DEBUG:
        a.e(f"s_mul_i32 s{S_T}, s2, 192")
        a.e(f"s_add_u32 s{S_T}, s{S_T}, {WS_DBG+0x20000}")
        a.e(f"v_add_u32 v1, s{S_T}, v1")
        a.vm(f"buffer_store_dword v4, v1, s[{SRD_WS}:{SRD_WS+3}], 0 offen offset:0", "dbg")
        a.vm_wait_all()
    a.label("L_a_finq_done")
    a.e("s_nop 4")
    a.e("s_waitcnt lgkmcnt(0)")
    a.e("s_barrier")

    a.e("v_lshrrev_b32 v1, 4, v0")
    a.e("v_lshlrev_b32 v1, 4, v1")
    for j in range(6):
        a.e(f"ds_read_b128 {v(V_Q+4*j,4)}, v1 offset:{L_Q+64*j}")

    KB = [POOL, POOL + 24]

    def issue_K(t):
        buf = KB[t % 2]
        so = "0" if t == 0 else f"s{S_C+2*t-1}"
        for j in range(6):
            a.vm(f"buffer_load_dwordx4 {v(buf+4*j,4)}, v{V_KOFF}, s[{SRD_K}:{SRD_K+3}], {so} offen offset:{64*j}", ("K", t))

    issue_K(0)
    issue_K(1)
    a.e("s_waitcnt lgkmcnt(0)")
    for t in range(4):
        buf = KB[t % 2]
        a.vm_wait(("K", t))
        for j in range(6):
            c = "0" if j == 0 else v(V_D, 4)
            a.e(f"v_mfma_f32_16x16x32_bf16 {v(V_D,4)}, {v(V_Q+4*j,4)}, {v(buf+4*j,4)}, {c}")
        if t + 2 < 4:
            issue_K(t + 2)
        bf16_round(a, 1, V_D)
        a.e(f"v_mul_f32 v1, s{S_SCALE}, v1")
        bf16_round(a, 1, 1)
        a.e(f"v_mul_f32 v{V_S+t}, s{S_LOG2E}, v1")
    a.e(f"v_max_f32 v{V_M}, v{V_S}, v{V_S+1}")
    a.e(f"v_max3_f32 v{V_M}, v{V_M}, v{V_S+2}, v{V_S+3}")
    for r in (8, 4, 2, 1):
        a.e(f"v_max_f32_dpp v{V_M}, v{V_M}, v{V_M} row_ror:{r} row_mask:0xf bank_mask:0xf")
    for t in range(4):
        a.e(f"v_sub_f32 v{V_S+t}, v{V_S+t}, v{V_M}")
        a.e(f"v_exp_f32 v{V_S+t}, v{V_S+t}")
    a.e(f"v_add_f32 v{V_L}, v{V_S}, v{V_S+1}")
    a.e(f"v_add_f32 v1, v{V_S+2}, v{V_S+3}")
    a.e(f"v_add_f32 v{V_L}, v{V_L}, v1")
    for t in range(4):
        a.e(f"v_mov_b32_dpp v1, v{V_S+t} quad_perm:[1,0,3,2] row_mask:0xf bank_mask:0xf")
        a.e(f"v_cvt_pk_bf16_f32 v{V_PK+t}, v{V_S+t}, v1")
    for r in (8, 4, 2, 1):
        a.e(f"v_add_f32_dpp v{V_L}, v{V_L}, v{V_L} row_ror:{r} row_mask:0xf bank_mask:0xf")

    VB = [POOL, POOL + 16, POOL + 32]

    def issue_V(u):
        buf = VB[u % 3]
        so = "0" if u == 0 else f"s{S_C+u-1}"
        for i in range(4):
            a.vm(f"buffer_load_dwordx3 {v(buf+4*i,3)}, v{V_VOFF}, s[{SRD_V}:{SRD_V+3}], {so} offen offset:{384*i}", ("V", u))

    issue_V(0); issue_V(1); issue_V(2)
    for u in range(8):
        buf = VB[u % 3]
        t, sub = u // 2, u % 2
        a.vm_wait(("V", u))
        for j in range(2):
            k_lo = 8 * sub + 2 * j
            a.e(f"v_mov_b32_dpp v3, v{V_PK+t} row_newbcast:{k_lo} row_mask:0x3 bank_mask:0xf")
            a.e(f"v_mov_b32_dpp v3, v{V_PK+t} row_newbcast:{k_lo+4} row_mask:0xc bank_mask:0xf")
            for c in range(3):
                A, B = buf + 4 * (2 * j) + c, buf + 4 * (2 * j + 1) + c
                t0, t1 = (4, 5) if c % 2 == 0 else (6, 7)
                a.e(f"v_perm_b32 v{t0}, v{B}, v{A}, s{S_SELLO}")
                a.e(f"v_perm_b32 v{t1}, v{B}, v{A}, s{S_SELHI}")
                first = (u == 0 and j == 0)
                c0 = "0" if first else f"v{ACC+2*c}"
                c1 = "0" if first else f"v{ACC+2*c+1}"
                a.e(f"v_dot2_f32_bf16 v{ACC+2*c}, v{t0}, v3, {c0}")
                a.e(f"v_dot2_f32_bf16 v{ACC+2*c+1}, v{t1}, v3, {c1}")
        if u + 3 < 8:
            issue_V(u + 3)
    a.e("v_and_b32 v1, 31, v0")
    a.e("v_mul_u32_u24 v1, 24, v1")
    a.e("v_lshrrev_b32 v2, 5, v0")
    a.e("v_mul_u32_u24 v2, 768, v2")
    a.e("v_add_u32 v1, v1, v2")
    a.e(f"s_mul_i32 s{S_T}, s{S_W}, 1536")
    a.e(f"v_add_u32 v1, s{S_T}, v1")
    for c in range(3):
        a.e(f"ds_write_b64 v1, {v(ACC+2*c,2)} offset:{L_OP+8*c}")
    a.e(f"s_lshl_b32 s{S_T}, s{S_W}, 3")
    a.e(f"v_mov_b32 v1, s{S_T}")
    a.e(f"ds_write_b64 v1, {v(V_M,2)} offset:{L_ML}")
    a.e("s_waitcnt lgkmcnt(0)")
    a.e("s_barrier")

    a.e(f"s_cmp_ge_u32 s{S_W}, 3")
    a.e("s_cbranch_scc1 L_a_fino_done")
    a.e("v_mov_b32 v1, 0")
    for k in range(8):
        a.e(f"ds_read_b128 {v(POOL+4*k,4)}, v1 offset:{L_ML+16*k}")
    a.e("s_waitcnt lgkmcnt(0)")
    a.e(f"v_max_f32 v2, v{POOL}, v{POOL+2}")
    for k in range(2, 16):
        a.e(f"v_max_f32 v2, v2, v{POOL+2*k}")
    SC = ACC2
    SC = POOL + 32
    for k in range(16):
        a.e(f"v_sub_f32 v{SC+k}, v{POOL+2*k}, v2")
    for k in range(16):
        a.e(f"v_exp_f32 v{SC+k}, v{SC+k}")
    a.e(f"v_mul_f32 v3, v{SC}, v{POOL+1}")
    for k in range(1, 16):
        a.e(f"v_fmac_f32 v3, v{SC+k}, v{POOL+2*k+1}")
    a.e("v_rcp_f32 v3, v3")
    a.e(f"s_lshl_b32 s{S_T}, s{S_W}, 8")
    a.e("v_lshlrev_b32 v1, 2, v0")
    a.e(f"v_add_u32 v1, s{S_T}, v1")
    a.e("v_mov_b32 v4, 0")
    for half in range(2):
        for k in range(16):
            a.e(f"ds_read_b32 v{POOL+k}, v1 offset:{L_OP+1536*k+768*half}")
        a.e("s_waitcnt lgkmcnt(0)")
        for k in range(16):
            a.e(f"v_fmac_f32 v4, v{SC+k}, v{POOL+k}")
    a.e("v_mul_f32 v4, v4, v3")
    a.e("v_cvt_pk_bf16_f32 v4, v4, v4")
    a.e("v_lshrrev_b32 v1, 1, v1")
    a.e(f"ds_write_b16 v1, v4 offset:{L_OBF}")
    if DEBUG:
        a.e(f"s_mul_i32 s{S_T}, s2, 384")
        a.e(f"s_add_u32 s{S_T}, s{S_T}, {WS_DBG+0x40000}")
        a.e(f"v_add_u32 v1, s{S_T}, v1")
        a.vm(f"buffer_store_short v4, v1, s[{SRD_WS}:{SRD_WS+3}], 0 offen offset:0", "dbg")
        a.vm_wait_all()
    a.label("L_a_fino_done")
    a.e("s_nop 4")
    a.e("s_waitcnt lgkmcnt(0)")
    a.e("s_barrier")

    ACA, ACB = ACC2, ACC2
    V_OA, V_OB = 13, 14
    a.e(f"s_mul_i32 s{S_T}, s{S_W}, 15360")
    a.e("v_lshlrev_b32 v1, 4, v0")
    a.e(f"v_add_u32 v{V_OA}, s{S_T}, v1")
    a.e("v_lshlrev_b32 v1, 2, v0")
    a.e(f"v_add_u32 v{V_OB}, s{S_T}, v1")
    a.e(f"v_add_u32 v{V_OB}, 1024, v{V_OB}")
    a.e(f"s_mul_i32 s{S_T}, s{S_W}, 24")
    a.e(f"v_mov_b32 v15, s{S_T}")
    for batch in range(2):
        for r in range(6):
            row = batch * 6 + r
            a.e(f"s_mov_b32 s{S_RUN}, {row*1280}")
            a.vm(f"buffer_load_dwordx4 {v(POOL+6*r,4)}, v{V_OA}, s[{SRD_WO}:{SRD_WO+3}], s{S_RUN} offen", ("wo", row))
            a.vm(f"buffer_load_dword v{POOL+6*r+4}, v{V_OB}, s[{SRD_WO}:{SRD_WO+3}], s{S_RUN} offen", ("wo", row))
        for pr in range(3):
            a.e(f"ds_read_b32 v3, v15 offset:{L_OBF+4*(batch*3+pr)}")
            a.vm_wait(("wo", batch * 6 + 2 * pr + 1))
            a.e("s_waitcnt lgkmcnt(0)")
            for c in range(5):
                A, B = POOL + 6 * (2 * pr) + c, POOL + 6 * (2 * pr + 1) + c
                t0, t1 = (4, 5) if c % 2 == 0 else (6, 7)
                a.e(f"v_perm_b32 v{t0}, v{B}, v{A}, s{S_SELLO}")
                a.e(f"v_perm_b32 v{t1}, v{B}, v{A}, s{S_SELHI}")
                first = (batch == 0 and pr == 0)
                c0 = "0" if first else f"v{ACA+2*c}"
                c1 = "0" if first else f"v{ACA+2*c+1}"
                a.e(f"v_dot2_f32_bf16 v{ACA+2*c}, v{t0}, v3, {c0}")
                a.e(f"v_dot2_f32_bf16 v{ACA+2*c+1}, v{t1}, v3, {c1}")
    a.e(f"s_mul_i32 s{S_T}, s{S_W}, 5120")
    a.e("v_lshlrev_b32 v1, 5, v0")
    a.e(f"v_add_u32 v1, s{S_T}, v1")
    a.e("v_lshlrev_b32 v2, 3, v0")
    a.e(f"v_add_u32 v2, s{S_T}, v2")
    a.e(f"ds_write_b128 v1, {v(ACA,4)} offset:{L_RED}")
    a.e(f"ds_write_b128 v1, {v(ACA+4,4)} offset:{L_RED+16}")
    a.e(f"ds_write_b64 v2, {v(ACA+8,2)} offset:{L_RED+2048}")
    a.e(f"s_mul_i32 s{S_T}, s{S_W}, 3840")
    a.e("v_lshlrev_b32 v3, 4, v0")
    a.e(f"v_add_u32 v{V_OA}, s{S_T}, v3")
    a.e("v_lshlrev_b32 v3, 2, v0")
    a.e(f"v_add_u32 v{V_OB}, s{S_T}, v3")
    a.e(f"v_add_u32 v{V_OB}, 1024, v{V_OB}")
    for r in range(3):
        a.vm(f"buffer_load_dwordx4 {v(POOL+6*r,4)}, v{V_OA}, s[{SRD_WD}:{SRD_WD+3}], 0 offen offset:{1280*r}", ("wd", r))
        a.vm(f"buffer_load_dword v{POOL+6*r+4}, v{V_OB}, s[{SRD_WD}:{SRD_WD+3}], 0 offen offset:{1280*r}", ("wd", r))
    a.e(f"s_mul_i32 s{S_T}, s{S_W}, 12")
    a.e(f"v_mov_b32 v15, s{S_T}")
    for c in range(10):
        a.e(f"v_mov_b32 v{POOL+24+c}, 0")
    ACB = POOL + 24
    for r in range(3):
        a.e(f"ds_read_b32 v3, v15 offset:{L_HID+4*r}")
        a.vm_wait(("wd", r))
        a.e("s_waitcnt lgkmcnt(0)")
        for c in range(5):
            w = POOL + 6 * r + c
            a.e(f"v_lshlrev_b32 v4, 16, v{w}")
            a.e(f"v_and_b32 v5, 0xffff0000, v{w}")
            a.e(f"v_fmac_f32 v{ACB+2*c}, v4, v3")
            a.e(f"v_fmac_f32 v{ACB+2*c+1}, v5, v3")
    a.e(f"ds_write_b128 v1, {v(ACB,4)} offset:{L_RED+2560}")
    a.e(f"ds_write_b128 v1, {v(ACB+4,4)} offset:{L_RED+2560+16}")
    a.e(f"ds_write_b64 v2, {v(ACB+8,2)} offset:{L_RED+2560+2048}")
    a.e("s_waitcnt lgkmcnt(0)")
    a.e("s_barrier")

    a.e(f"s_cmp_ge_u32 s{S_W}, 10")
    a.e("s_cbranch_scc1 L_a_end")
    a.e(f"s_lshl_b32 s{S_T}, s{S_W}, 8")
    a.e("v_lshlrev_b32 v1, 2, v0")
    a.e(f"v_add_u32 v1, s{S_T}, v1")
    a.e(f"v_add_u32 v2, {L_RED}, v1")
    a.e(f"v_add_u32 v3, {L_RED+40960}, v1")
    for k in range(16):
        rr = 2 if k < 8 else 3
        kk = k % 8
        a.e(f"ds_read_b32 v{POOL+k}, v{rr} offset:{5120*kk}")
        a.e(f"ds_read_b32 v{POOL+16+k}, v{rr} offset:{5120*kk+2560}")
    a.e("s_waitcnt lgkmcnt(0)")
    for k in range(1, 16):
        a.e(f"v_add_f32 v{POOL}, v{POOL}, v{POOL+k}")
        a.e(f"v_add_f32 v{POOL+16}, v{POOL+16}, v{POOL+16+k}")
    a.e(f"s_mul_i32 s{S_T}, s2, 2560")
    a.e(f"v_add_u32 v1, s{S_T}, v1")
    a.vm(f"buffer_store_dword v{POOL}, v1, s[{SRD_WS}:{SRD_WS+3}], 0 offen offset:0", "st")
    a.e(f"v_add_u32 v2, {WS_PB}, v1")
    a.vm(f"buffer_store_dword v{POOL+16}, v2, s[{SRD_WS}:{SRD_WS+3}], 0 offen", "st")
    a.vm_wait_all()
    a.label("L_a_end")
    a.e("s_endpgm")
    return a.text()


def kernel_b():
    a = Asm()
    a.label("mixb_kernel")
    a.e("s_cmp_ge_u32 s2, 20")
    a.e("s_cbranch_scc1 L_b_end")
    a.e("s_load_dwordx2 s[4:5], s[0:1], 0")
    a.e("s_load_dwordx2 s[6:7], s[0:1], 72")
    a.e("s_load_dwordx2 s[8:9], s[0:1], 80")
    a.e("s_load_dwordx2 s[10:11], s[0:1], 96")
    a.e("v_lshrrev_b32 v1, 6, v0")
    a.e("v_and_b32 v0, 63, v0")
    a.e("v_readfirstlane_b32 s12, v1")
    a.e("s_lshl_b32 s13, s2, 2")
    a.e("s_add_u32 s12, s12, s13")
    a.e("s_mul_i32 s13, s12, 205")
    a.e("s_lshr_b32 s13, s13, 11")
    a.e("s_mul_i32 s14, s13, 10")
    a.e("s_sub_u32 s14, s12, s14")
    a.e("s_waitcnt lgkmcnt(0)")
    srd(a, 16, 4, 5, None, 10240)
    srd(a, 20, 6, 7, None, 1280)
    srd(a, 24, 8, 9, None, 10240)
    srd(a, 28, 10, 11, None, 8 << 20)
    a.e("s_mul_i32 s15, s13, 81920")
    a.e("s_lshl_b32 s32, s14, 8")
    a.e("s_add_u32 s15, s15, s32")
    a.e("v_lshlrev_b32 v1, 2, v0")
    a.e("v_add_u32 v1, s15, v1")
    a.e(f"v_add_u32 v2, {WS_PB}, v1")
    a.e("s_mov_b32 s33, 0")
    for h in range(32):
        a.vm(f"buffer_load_dword v{16+h}, v1, s[28:31], s33 offen", "pa")
        a.vm(f"buffer_load_dword v{48+h}, v2, s[28:31], s33 offen", "pb")
        if h < 31:
            a.e("s_add_u32 s33, s33, 2560")
    a.e("v_mul_u32_u24 v3, 20, v0")
    a.e("s_mul_i32 s34, s13, 1280")
    a.e("v_add_u32 v4, s34, v3")
    for j in range(5):
        a.vm(f"buffer_load_dword v{80+j}, v4, s[16:19], 0 offen offset:{4*j}", "gx")
        a.vm(f"buffer_load_dword v{86+j}, v3, s[20:23], 0 offen offset:{4*j}", "gx")
    a.e("v_mov_b32 v5, 0")
    a.vm_wait("gx")
    for j in range(5):
        for half in range(2):
            if half == 0:
                a.e(f"v_lshlrev_b32 v6, 16, v{80+j}")
                a.e(f"v_lshlrev_b32 v7, 16, v{86+j}")
            else:
                a.e(f"v_and_b32 v6, 0xffff0000, v{80+j}")
                a.e(f"v_and_b32 v7, 0xffff0000, v{86+j}")
            a.e("v_mul_f32 v6, v6, v7")
            bf16_round(a, 6, 6)
            a.e("v_add_f32 v5, v5, v6")
    for r in (8, 4, 2, 1):
        a.e(f"v_add_f32_dpp v5, v5, v5 row_ror:{r} row_mask:0xf bank_mask:0xf")
    a.e("s_nop 1")
    for k in range(4):
        a.e(f"v_readlane_b32 s{36+k}, v5, {16*k}")
    a.e("s_nop 1")
    a.e("v_mov_b32 v5, s36")
    for k in range(1, 4):
        a.e(f"v_add_f32 v5, s{36+k}, v5")
    bf16_round(a, 5, 5)
    a.e(f"v_mul_f32 v5, {f32(-LOG2E)}, v5")
    a.e("v_exp_f32 v5, v5")
    a.e("v_add_f32 v5, 1.0, v5")
    a.e("v_rcp_f32 v5, v5")
    bf16_round(a, 5, 5)
    a.e("v_sub_f32 v6, 1.0, v5")
    bf16_round(a, 6, 6)
    a.vm_wait_all()
    for h in range(1, 32):
        a.e(f"v_add_f32 v16, v16, v{16+h}")
        a.e(f"v_add_f32 v48, v48, v{48+h}")
    bf16_round(a, 16, 16)
    bf16_round(a, 48, 48)
    a.e("v_mul_f32 v16, v5, v16")
    bf16_round(a, 16, 16)
    a.e("v_mul_f32 v48, v6, v48")
    bf16_round(a, 48, 48)
    a.e("v_add_f32 v16, v16, v48")
    a.e("v_cvt_pk_bf16_f32 v16, v16, v16")
    a.e("s_lshl_b32 s32, s14, 7")
    a.e("s_add_u32 s34, s34, s32")
    a.e("v_lshlrev_b32 v1, 1, v0")
    a.e("v_add_u32 v1, s34, v1")
    a.vm("buffer_store_short v16, v1, s[24:27], 0 offen", "st")
    a.vm_wait_all()
    a.label("L_b_end")
    a.e("s_endpgm")
    return a.text()


def main():
    hdr = open(f"cdna_kernels/{NAME}.s.ref").read().split("; Override launch geometry")[0]
    out = hdr
    out += f"; @launch kernel={NAME}_kernel grid=(256,1,1) block=(1024,1,1) lds={LDS_BYTES}\n"
    out += f"; @launch kernel=mixb_kernel grid=(20,1,1) block=(256,1,1) lds=0\n"
    out += '.amdgcn_target "amdgcn-amd-amdhsa--gfx950"\n.text\n'
    out += f".globl {NAME}_kernel\n.p2align 8\n.type {NAME}_kernel,@function\n"
    out += kernel_a()
    out += ".globl mixb_kernel\n.p2align 8\n.type mixb_kernel,@function\n"
    out += kernel_b()
    out += '.section .rodata,"a"\n'
    for name, vg, sg in ((NAME + "_kernel", 128, 100), ("mixb_kernel", 96, 48)):
        out += f""".p2align 6
.amdhsa_kernel {name}
  .amdhsa_next_free_vgpr {vg}
  .amdhsa_next_free_sgpr {sg}
  .amdhsa_accum_offset {vg}
  .amdhsa_group_segment_fixed_size 0
  .amdhsa_kernarg_size 104
  .amdhsa_user_sgpr_count 2
  .amdhsa_user_sgpr_kernarg_segment_ptr 1
  .amdhsa_system_sgpr_workgroup_id_x 1
.end_amdhsa_kernel
"""
    dst = f"cdna_kernels/{NAME}.s"
    if "--out" in sys.argv:
        dst = sys.argv[sys.argv.index("--out") + 1]
    open(dst, "w").write(out)
    print("wrote", dst, len(out), "bytes")


if __name__ == "__main__":
    main()
```

```python
import sys, struct
sys.path.insert(0, "dev")
from asmlib import Asm, v, s

NAME = "gated_mix__sliding_block_cached__geglu_ffn__decode"
DEBUG = "--debug" in sys.argv
STAMP = "--stamp" in sys.argv
HMAP = "--nohmap" not in sys.argv

def f32(x):
    return "0x%08x" % struct.unpack("<I", struct.pack("<f", x))[0]

SCALE = 192 ** -0.5
LOG2E = 1.4426950408889634

SRD_K, SRD_V, SRD_WQ, SRD_WG, SRD_WU, SRD_WO, SRD_WD, SRD_WS, SRD_X = 24, 28, 32, 36, 40, 44, 48, 52, 56
S_W, S_B, S_H, S_T = 60, 61, 62, 63
S_XP = 64
S_RUN = 84
S_SELLO, S_SELHI, S_SCALE, S_LOG2E, S_T1, S_T2 = 85, 86, 87, 88, 89, 90
S_C = 91

L_QP = 0
L_OP = 0
L_GP = 24576
L_UP = 27648
L_X = 30720
L_Q = 34816
L_HID = 35328
L_ML = 35584
L_OBF = 35840
L_RED = 36864
L_ST = 36864
ST_ROW = 400
LDS_BYTES = L_ST + 16 * 6400

WS_PA = 0
WS_PB = 655360
WS_DBG = 2 << 20


def srd(a, base, plo, phi, off_lo=None, size=0, size_s=None):
    if off_lo is None:
        a.e(f"s_mov_b32 s{base}, s{plo}")
        a.e(f"s_and_b32 s{base+1}, s{phi}, 0xffff")
    else:
        a.e(f"s_add_u32 s{base}, s{plo}, s{off_lo}")
        a.e(f"s_addc_u32 s{base+1}, s{phi}, 0")
        a.e(f"s_and_b32 s{base+1}, s{base+1}, 0xffff")
    if size_s is None:
        a.e(f"s_mov_b32 s{base+2}, {size}")
    else:
        a.e(f"s_mov_b32 s{base+2}, s{size_s}")
    a.e(f"s_mov_b32 s{base+3}, 0x00020000")


def bf16_round(a, dst, src):
    a.e(f"v_cvt_pk_bf16_f32 v{dst}, v{src}, v{src}")
    a.e(f"v_lshlrev_b32 v{dst}, 16, v{dst}")


def kernel_a():
    a = Asm()
    V_KOFF, V_VOFF = 9, 10
    V_WOA, V_WOB, V_GUOFF, V_XOFF, V_LD = 11, 12, 13, 14, 15
    ACC = 16
    V_M, V_L = 22, 23
    V_S = 24
    V_PK = 28
    V_D = 4
    WREG = [24 + 4 * i for i in range(20)]
    LB = [104, 32]
    V_Q = 80
    V_SW = 56
    V_KRD, V_VRD = 59, 60
    SLOT = [32, 48, 64, 80, 96, 112]

    stamps = []
    def stamp():
        if STAMP:
            k = len(stamps)
            stamps.append(k)
            a.e(f"s_memtime s[98:99]")
            a.e("s_waitcnt lgkmcnt(0)")
            a.e(f"v_writelane_b32 v15, s98, {k}")
    a.label(f"{NAME}_kernel")
    a.e("s_cmp_ge_u32 s2, 256")
    a.e("s_cbranch_scc1 L_a_end")
    a.e("s_load_dwordx4 s[4:7], s[0:1], 0")
    a.e("s_load_dwordx4 s[8:11], s[0:1], 16")
    a.e("s_load_dwordx4 s[12:15], s[0:1], 32")
    a.e("s_load_dwordx4 s[16:19], s[0:1], 48")
    a.e("s_load_dwordx2 s[20:21], s[0:1], 64")
    a.e("s_load_dwordx2 s[22:23], s[0:1], 96")
    a.e("v_lshrrev_b32 v1, 6, v0")
    a.e("v_and_b32 v0, 63, v0")
    a.e(f"v_readfirstlane_b32 s{S_W}, v1")
    a.e(f"s_lshr_b32 s{S_B}, s2, 5")
    if HMAP:
        a.e(f"s_and_b32 s{S_H}, s2, 7")
        a.e(f"s_lshl_b32 s{S_H}, s{S_H}, 2")
        a.e(f"s_bfe_u32 s{S_T}, s2, 0x20003")
        a.e(f"s_add_u32 s{S_H}, s{S_H}, s{S_T}")
        a.e(f"s_lshl_b32 s{S_T}, s{S_B}, 5")
        a.e(f"s_add_u32 s2, s{S_T}, s{S_H}")
    else:
        a.e(f"s_and_b32 s{S_H}, s2, 31")
    a.e(f"s_mov_b32 s{S_SELLO}, 0x05040100")
    a.e(f"s_mov_b32 s{S_SELHI}, 0x07060302")
    a.e(f"s_mov_b32 s{S_SCALE}, {f32(SCALE)}")
    a.e(f"s_mov_b32 s{S_LOG2E}, {f32(LOG2E)}")
    for k in range(1, 8):
        a.e(f"s_mov_b32 s{S_C+k-1}, {3072*k}")
    a.e("v_lshlrev_b32 v1, 4, v0")
    a.e(f"s_mul_i32 s{S_T}, s{S_W}, 24576")
    a.e(f"v_add_u32 v{V_KOFF}, s{S_T}, v1")
    a.e("v_and_b32 v1, 31, v0")
    a.e("v_mul_u32_u24 v1, 12, v1")
    a.e("v_lshrrev_b32 v2, 5, v0")
    a.e("v_mul_u32_u24 v2, 245760, v2")
    a.e("v_add_u32 v1, v1, v2")
    a.e(f"s_mul_i32 s{S_T}, s{S_W}, 491520")
    a.e(f"v_add_u32 v{V_LD}, s{S_T}, v1")
    a.e("s_waitcnt lgkmcnt(0)")
    a.e(f"s_mul_i32 s{S_T}, s{S_H}, 384")
    a.e(f"s_sub_u32 s{S_T1}, 7864320, s{S_T}")
    srd(a, SRD_WQ, 10, 11, S_T, size_s=S_T1)
    a.e(f"s_mul_i32 s{S_T}, s2, 1572864")
    a.e(f"s_add_u32 s{S_T}, s{S_T}, 1179648")
    srd(a, SRD_K, 6, 7, S_T, 393216)
    for i in range(20):
        a.e(f"s_mov_b32 s{S_RUN}, {i*12288}")
        a.vm(f"buffer_load_dwordx3 {v(WREG[i],3)}, v{V_LD}, s[{SRD_WQ}:{SRD_WQ+3}], s{S_RUN} offen", ("wq", i))

    def issue_T(t):
        buf = LB[t % 2]
        srdx = SRD_K if t < 4 else SRD_V
        tt = t % 4
        for j in range(6):
            k = 2 * tt + (1 if j >= 3 else 0)
            so = "0" if k == 0 else f"s{S_C+k-1}"
            a.vm(f"buffer_load_dwordx4 {v(buf+4*j,4)}, v{V_KOFF}, s[{srdx}:{srdx+3}], {so} offen offset:{1024*(j%3)} nt", ("T", t))

    def stage_T(t):
        buf = LB[t % 2]
        a.vm_wait(("T", t))
        for j in range(6):
            a.e(f"ds_write_b128 v{V_SW+j%3}, {v(buf+4*j,4)} offset:{3200*(j//3)}")
    srd(a, SRD_X, 4, 5, None, 10240)
    a.e(f"s_lshl_b32 s{S_T1}, s{S_W}, 6")
    a.e(f"v_add_u32 v1, s{S_T1}, v0")
    a.e(f"s_mul_i32 s{S_T1}, s{S_B}, 1280")
    a.e("v_lshlrev_b32 v2, 1, v1")
    a.e(f"v_add_u32 v2, s{S_T1}, v2")
    a.vm(f"buffer_load_ushort v{V_L}, v2, s[{SRD_X}:{SRD_X+3}], 0 offen", "x")
    a.e(f"v_lshlrev_b32 v{V_M}, 2, v1")
    a.e("s_barrier")
    issue_T(0)
    stamp()
    srd(a, SRD_V, 8, 9, S_T, 393216)
    a.e(f"s_mul_i32 s{S_T}, s{S_H}, 96")
    a.e(f"s_sub_u32 s{S_T1}, 1966080, s{S_T}")
    srd(a, SRD_WG, 16, 17, S_T, size_s=S_T1)
    srd(a, SRD_WU, 18, 19, S_T, size_s=S_T1)
    a.e(f"s_mul_i32 s{S_T}, s{S_H}, 245760")
    srd(a, SRD_WO, 12, 13, S_T, 245760)
    a.e(f"s_mul_i32 s{S_T}, s{S_H}, 61440")
    srd(a, SRD_WD, 20, 21, S_T, 61440)
    srd(a, SRD_WS, 22, 23, None, 8 << 20)
    a.e(f"s_mul_i32 s{S_T}, s{S_B}, 1280")
    a.e(f"s_mul_i32 s{S_T1}, s{S_W}, 80")
    a.e(f"s_add_u32 s{S_T}, s{S_T}, s{S_T1}")
    a.e(f"s_add_u32 s4, s4, s{S_T}")
    a.e("s_addc_u32 s5, s5, 0")
    for j in range(5):
        a.e(f"s_load_dwordx4 s[{S_XP+4*j}:{S_XP+4*j+3}], s[4:5], {16*j}")
    a.e("s_waitcnt lgkmcnt(0)")
    a.e("s_mov_b32 vcc_lo, 0")
    a.e("s_mov_b32 vcc_hi, -1")
    for p in range(10):
        a.vm_wait(("wq", 2 * p + 1))
        if p in (0, 9):
            stamp()
        a.e(f"v_mov_b32 v3, s{S_XP+10+p}")
        a.e(f"v_mov_b32 v8, s{S_XP+p}")
        a.e(f"v_cndmask_b32 v3, v8, v3, vcc")
        xv = 3
        for c in range(3):
            A, B = WREG[2 * p] + c, WREG[2 * p + 1] + c
            t0, t1 = (4, 5) if c % 2 == 0 else (6, 7)
            a.e(f"v_perm_b32 v{t0}, v{B}, v{A}, s{S_SELLO}")
            a.e(f"v_perm_b32 v{t1}, v{B}, v{A}, s{S_SELHI}")
            c0 = "0" if p == 0 else f"v{ACC+2*c}"
            c1 = "0" if p == 0 else f"v{ACC+2*c+1}"
            a.e(f"v_dot2_f32_bf16 v{ACC+2*c}, v{t0}, v{xv}, {c0}")
            a.e(f"v_dot2_f32_bf16 v{ACC+2*c+1}, v{t1}, v{xv}, {c1}")
        if p == 3:
            issue_T(1)
    a.e("v_and_b32 v1, 31, v0")
    a.e("v_mul_u32_u24 v1, 24, v1")
    a.e("v_lshrrev_b32 v2, 5, v0")
    a.e("v_mul_u32_u24 v2, 768, v2")
    a.e("v_add_u32 v1, v1, v2")
    a.e(f"s_mul_i32 s{S_T}, s{S_W}, 1536")
    a.e(f"v_add_u32 v1, s{S_T}, v1")
    for c in range(3):
        a.e(f"ds_write_b64 v1, {v(ACC+2*c,2)} offset:{L_QP+8*c}")
    a.vm_wait("x")
    a.e(f"v_lshlrev_b32 v{V_L}, 16, v{V_L}")
    a.e(f"ds_write_b32 v{V_M}, v{V_L} offset:{L_X}")
    a.e("s_waitcnt lgkmcnt(0)")
    a.e("s_barrier")
    stamp()

    a.e(f"s_cmp_ge_u32 s{S_W}, 3")
    a.e("s_cbranch_scc1 L_a_finq_done")
    a.e(f"s_lshl_b32 s{S_T}, s{S_W}, 8")
    a.e("v_lshlrev_b32 v1, 2, v0")
    a.e(f"v_add_u32 v1, s{S_T}, v1")
    FQ = V_Q
    a.e("v_mov_b32 v2, 0")
    for g in range(2):
        for k in range(16):
            a.e(f"ds_read_b32 v{FQ+k}, v1 offset:{L_QP+768*(16*g+k)}")
        a.e("s_waitcnt lgkmcnt(0)")
        for k in range(16):
            a.e(f"v_add_f32 v2, v2, v{FQ+k}")
    a.e("v_cvt_pk_bf16_f32 v2, v2, v2")
    a.e("v_lshrrev_b32 v1, 1, v1")
    a.e(f"ds_write_b16 v1, v2 offset:{L_Q}")
    a.label("L_a_finq_done")
    a.e("s_nop 4")
    a.e("s_waitcnt lgkmcnt(0)")
    a.e("s_barrier")
    stamp()
    a.e("v_lshrrev_b32 v1, 4, v0")
    a.e("v_lshlrev_b32 v1, 4, v1")
    for j in range(6):
        a.e(f"ds_read_b128 {v(V_Q+4*j,4)}, v1 offset:{L_Q+64*j}")

    for j in range(3):
        a.e(f"v_add_u32 v1, {64*j}, v0")
        a.e("v_mul_u32_u24 v2, 2731, v1")
        a.e("v_lshrrev_b32 v2, 16, v2")
        a.e("v_mul_u32_u24 v3, 24, v2")
        a.e("v_sub_u32 v1, v1, v3")
        a.e("v_lshlrev_b32 v1, 4, v1")
        a.e(f"v_mul_u32_u24 v2, {ST_ROW}, v2")
        a.e("v_add_u32 v1, v1, v2")
        a.e(f"s_mul_i32 s{S_T}, s{S_W}, 6400")
        a.e(f"s_add_u32 s{S_T}, s{S_T}, {L_ST}")
        a.e(f"v_add_u32 v{V_SW+j}, s{S_T}, v1")
    a.e("v_and_b32 v1, 15, v0")
    a.e(f"v_mul_u32_u24 v1, {ST_ROW}, v1")
    a.e("v_lshrrev_b32 v2, 4, v0")
    a.e("v_lshlrev_b32 v2, 4, v2")
    a.e("v_add_u32 v1, v1, v2")
    a.e(f"v_add_u32 v{V_KRD}, s{S_T}, v1")
    a.e("v_and_b32 v1, 31, v0")
    a.e("v_min_u32 v1, 23, v1")
    a.e("v_lshlrev_b32 v1, 4, v1")
    a.e("v_lshrrev_b32 v2, 5, v0")
    a.e(f"v_mul_u32_u24 v2, {8*ST_ROW}, v2")
    a.e("v_add_u32 v1, v1, v2")
    a.e(f"v_add_u32 v{V_VRD}, s{S_T}, v1")

    def gu_offsets():
        a.e(f"v_and_b32 v{V_GUOFF}, 7, v0")
        a.e(f"v_mul_u32_u24 v1, 20, v{V_GUOFF}")
        a.e(f"v_mul_u32_u24 v{V_GUOFF}, 15360, v{V_GUOFF}")
        a.e("v_lshrrev_b32 v2, 3, v0")
        a.e("v_mul_u32_u24 v2, 12, v2")
        a.e(f"v_add_u32 v{V_GUOFF}, v{V_GUOFF}, v2")
        a.e(f"s_mul_i32 s{S_T}, s{S_W}, 122880")
        a.e(f"v_add_u32 v{V_GUOFF}, s{S_T}, v{V_GUOFF}")
        a.e(f"s_mul_i32 s{S_T}, s{S_W}, 160")
        a.e(f"v_add_u32 v{V_XOFF}, s{S_T}, v1")

    FBASE = 64
    FACC = ACC
    GU_ROUNDS = [(0, [0, 1, 2, 3]), (0, [4]), (1, [0, 1, 2, 3]), (1, [4])]

    def issue_gu(r):
        m, rows = GU_ROUNDS[r]
        srdm = SRD_WG if m == 0 else SRD_WU
        for n, i in enumerate(rows):
            so = "0" if i == 0 else f"s{S_C+i-1}"
            a.vm(f"buffer_load_dwordx3 {v(FBASE+4*n,3)}, v{V_GUOFF}, s[{srdm}:{srdm+3}], {so} offen", ("gu", r))

    def consume_gu(r):
        m, rows = GU_ROUNDS[r]
        for n, i in enumerate(rows):
            a.e(f"ds_read_b32 v{FBASE+4*n+3}, v{V_XOFF} offset:{L_X+4*i}")
        a.vm_wait(("gu", r))
        a.e("s_waitcnt lgkmcnt(0)")
        for n, i in enumerate(rows):
            xr = FBASE + 4 * n + 3
            for c in range(3):
                w = FBASE + 4 * n + c
                a.e(f"v_lshlrev_b32 v1, 16, v{w}")
                a.e(f"v_and_b32 v2, 0xffff0000, v{w}")
                if i == 0:
                    a.e(f"v_mul_f32 v{FACC+2*c}, v1, v{xr}")
                    a.e(f"v_mul_f32 v{FACC+2*c+1}, v2, v{xr}")
                else:
                    a.e(f"v_fmac_f32 v{FACC+2*c}, v1, v{xr}")
                    a.e(f"v_fmac_f32 v{FACC+2*c+1}, v2, v{xr}")
        if rows[-1] != 4:
            return
        for mode in ("quad_perm:[1,0,3,2]", "quad_perm:[2,3,0,1]", "row_half_mirror"):
            for c in range(6):
                a.e(f"v_add_f32_dpp v{FACC+c}, v{FACC+c}, v{FACC+c} {mode} row_mask:0xf bank_mask:0xf")
        a.e("v_lshrrev_b32 v1, 3, v0")
        a.e("v_mul_u32_u24 v1, 24, v1")
        a.e(f"s_mul_i32 s{S_T}, s{S_W}, 192")
        a.e(f"v_add_u32 v1, s{S_T}, v1")
        lo = L_GP if m == 0 else L_UP
        for c in range(3):
            a.e(f"ds_write_b64 v1, {v(FACC+2*c,2)} offset:{lo+8*c}")

    def wo_regs(r):
        if r < 4:
            return 80 + 4 * r, 96 + r
        if r < 7:
            return 64 + 4 * (r - 4), 76 + (r - 4)
        if r < 11:
            return 104 + 4 * (r - 7), 120 + (r - 7)
        return 32 + 4 * (r - 11), 48 + (r - 11)

    def issue_wo(rows):
        for r in rows:
            x4, x1 = wo_regs(r)
            a.e(f"s_mov_b32 s{S_RUN}, {r*1280}")
            a.vm(f"buffer_load_dwordx4 {v(x4,4)}, v{V_WOA}, s[{SRD_WO}:{SRD_WO+3}], s{S_RUN} offen", ("wo", r))
            a.vm(f"buffer_load_dword v{x1}, v{V_WOB}, s[{SRD_WO}:{SRD_WO+3}], s{S_RUN} offen", ("wo", r))

    def issue_wd():
        a.e(f"s_mul_i32 s{S_T}, s{S_W}, 3840")
        a.e("v_lshlrev_b32 v1, 4, v0")
        a.e(f"v_add_u32 v1, s{S_T}, v1")
        a.e("v_lshlrev_b32 v2, 2, v0")
        a.e(f"v_add_u32 v2, s{S_T}, v2")
        for r in range(3):
            x4, x1 = wo_regs(12 + r)
            a.vm(f"buffer_load_dwordx4 {v(x4,4)}, v1, s[{SRD_WD}:{SRD_WD+3}], 0 offen offset:{1280*r}", ("wd", r))
            a.vm(f"buffer_load_dword v{x1}, v2, s[{SRD_WD}:{SRD_WD+3}], 0 offen offset:{1280*r+1024}", ("wd", r))

    gu_offsets()
    for t in range(4):
        buf = LB[t % 2]
        stage_T(t)
        a.e("s_waitcnt lgkmcnt(0)")
        for j in range(6):
            a.e(f"ds_read_b128 {v(buf+4*j,4)}, v{V_KRD} offset:{64*j}")
        a.e("s_waitcnt lgkmcnt(0)")
        for j in range(6):
            c = "0" if j == 0 else v(V_D, 4)
            a.e(f"v_mfma_f32_16x16x32_bf16 {v(V_D,4)}, {v(V_Q+4*j,4)}, {v(buf+4*j,4)}, {c}")
        if t > 0:
            consume_gu(t - 1)
        issue_gu(t)
        issue_T(t + 2)
        bf16_round(a, 1, V_D)
        a.e(f"v_mul_f32 v1, s{S_SCALE}, v1")
        bf16_round(a, 1, 1)
        a.e(f"v_mul_f32 v{V_S+t}, s{S_LOG2E}, v1")
    stamp()
    a.e(f"v_max_f32 v{V_M}, v{V_S}, v{V_S+1}")
    a.e(f"v_max3_f32 v{V_M}, v{V_M}, v{V_S+2}, v{V_S+3}")
    for r in (8, 4, 2, 1):
        a.e(f"v_max_f32_dpp v{V_M}, v{V_M}, v{V_M} row_ror:{r} row_mask:0xf bank_mask:0xf")
    for t in range(4):
        a.e(f"v_sub_f32 v{V_S+t}, v{V_S+t}, v{V_M}")
        a.e(f"v_exp_f32 v{V_S+t}, v{V_S+t}")
    a.e(f"v_add_f32 v{V_L}, v{V_S}, v{V_S+1}")
    a.e(f"v_add_f32 v1, v{V_S+2}, v{V_S+3}")
    a.e(f"v_add_f32 v{V_L}, v{V_L}, v1")
    for t in range(4):
        a.e(f"v_mov_b32_dpp v1, v{V_S+t} quad_perm:[1,0,3,2] row_mask:0xf bank_mask:0xf")
        a.e(f"v_cvt_pk_bf16_f32 v{V_PK+t}, v{V_S+t}, v1")
    for r in (8, 4, 2, 1):
        a.e(f"v_add_f32_dpp v{V_L}, v{V_L}, v{V_L} row_ror:{r} row_mask:0xf bank_mask:0xf")
    consume_gu(3)
    a.e(f"s_mul_i32 s{S_T}, s{S_W}, 15360")
    a.e("v_lshlrev_b32 v1, 4, v0")
    a.e(f"v_add_u32 v{V_WOA}, s{S_T}, v1")
    a.e("v_lshlrev_b32 v1, 2, v0")
    a.e(f"v_add_u32 v{V_WOB}, s{S_T}, v1")
    a.e(f"v_add_u32 v{V_WOB}, 1024, v{V_WOB}")
    issue_wo([0, 1, 2, 3, 4, 5, 6])

    OACC = 16
    a.e(f"v_mov_b32 v61, v{V_M}")
    a.e(f"v_mov_b32 v62, v{V_L}")
    for t in range(4, 8):
        buf = LB[t % 2]
        stage_T(t)
        a.e("s_waitcnt lgkmcnt(0)")
        for hh in range(2):
            for i in range(4):
                a.e(f"ds_read_b128 {v(buf+4*i,4)}, v{V_VRD} offset:{ST_ROW*(4*hh+i)}")
            a.e("s_waitcnt lgkmcnt(0)")
            for j in range(2):
                k_lo = 4 * hh + 2 * j
                a.e(f"v_mov_b32_dpp v3, v{V_PK+t-4} row_newbcast:{k_lo} row_mask:0x3 bank_mask:0xf")
                a.e(f"v_mov_b32_dpp v3, v{V_PK+t-4} row_newbcast:{k_lo+8} row_mask:0xc bank_mask:0xf")
                for c in range(4):
                    A, B = buf + 4 * (2 * j) + c, buf + 4 * (2 * j + 1) + c
                    t0, t1 = (4, 5) if c % 2 == 0 else (6, 7)
                    a.e(f"v_perm_b32 v{t0}, v{B}, v{A}, s{S_SELLO}")
                    a.e(f"v_perm_b32 v{t1}, v{B}, v{A}, s{S_SELHI}")
                    first = (t == 4 and hh == 0 and j == 0)
                    c0 = "0" if first else f"v{OACC+2*c}"
                    c1 = "0" if first else f"v{OACC+2*c+1}"
                    a.e(f"v_dot2_f32_bf16 v{OACC+2*c}, v{t0}, v3, {c0}")
                    a.e(f"v_dot2_f32_bf16 v{OACC+2*c+1}, v{t1}, v3, {c1}")
        if t + 2 < 8:
            issue_T(t + 2)
        elif t == 6:
            issue_wo([7, 8, 9, 10])
        else:
            issue_wo([11])
            issue_wd()
    stamp()
    a.e("v_and_b32 v1, 31, v0")
    a.e("v_min_u32 v1, 23, v1")
    a.e("v_lshlrev_b32 v1, 5, v1")
    a.e("v_lshrrev_b32 v2, 5, v0")
    a.e("v_mul_u32_u24 v2, 768, v2")
    a.e("v_add_u32 v1, v1, v2")
    a.e(f"s_mul_i32 s{S_T}, s{S_W}, 1536")
    a.e(f"v_add_u32 v1, s{S_T}, v1")
    a.e("v_and_b32 v2, 31, v0")
    a.e("v_cmp_gt_u32 vcc, 24, v2")
    a.e("s_and_saveexec_b64 s[98:99], vcc")
    a.e(f"ds_write_b128 v1, {v(OACC,4)} offset:{L_OP}")
    a.e(f"ds_write_b128 v1, {v(OACC+4,4)} offset:{L_OP+16}")
    a.e("s_mov_b64 exec, s[98:99]")
    a.e(f"s_lshl_b32 s{S_T}, s{S_W}, 3")
    a.e(f"v_mov_b32 v1, s{S_T}")
    a.e(f"ds_write_b64 v1, v[61:62] offset:{L_ML}") if False else None
    a.e("v_mov_b32 v2, v61")
    a.e("v_mov_b32 v3, v62")
    a.e(f"ds_write_b64 v1, v[2:3] offset:{L_ML}")
    a.e("s_waitcnt lgkmcnt(0)")
    a.e("s_barrier")

    FR = 16
    a.e(f"s_cmp_ge_u32 s{S_W}, 3")
    a.e("s_cbranch_scc1 L_a_fino_skip")
    a.e("v_and_b32 v1, 15, v0")
    a.e("v_lshlrev_b32 v1, 3, v1")
    a.e(f"ds_read_b64 v[2:3], v1 offset:{L_ML}")
    a.e("s_waitcnt lgkmcnt(0)")
    a.e("v_mov_b32 v4, v2")
    for r in (8, 4, 2, 1):
        a.e(f"v_max_f32_dpp v4, v4, v4 row_ror:{r} row_mask:0xf bank_mask:0xf")
    a.e("v_sub_f32 v2, v2, v4")
    a.e("v_exp_f32 v2, v2")
    a.e("v_mul_f32 v3, v2, v3")
    for r in (8, 4, 2, 1):
        a.e(f"v_add_f32_dpp v3, v3, v3 row_ror:{r} row_mask:0xf bank_mask:0xf")
    a.e("v_rcp_f32 v3, v3")
    a.e("v_mul_f32 v2, v2, v3")
    a.e("s_nop 0")
    for k in range(16):
        a.e(f"v_readlane_b32 s{S_XP+k}, v2, {k}")
    a.e(f"s_lshl_b32 s{S_T}, s{S_W}, 8")
    a.e("v_lshlrev_b32 v1, 2, v0")
    a.e(f"v_add_u32 v1, s{S_T}, v1")
    a.e("v_mov_b32 v4, 0")
    for half in range(2):
        for k in range(16):
            a.e(f"ds_read_b32 v{FR+k}, v1 offset:{L_OP+1536*k+768*half}")
        a.e("s_waitcnt lgkmcnt(0)")
        for k in range(16):
            a.e(f"v_fmac_f32 v4, s{S_XP+k}, v{FR+k}")
    a.e("v_cvt_pk_bf16_f32 v4, v4, v4")
    a.e("v_lshrrev_b32 v1, 1, v1")
    a.e(f"ds_write_b16 v1, v4 offset:{L_OBF}")
    a.e("s_branch L_a_fino_done")
    a.label("L_a_fino_skip")
    a.e(f"s_cmp_lg_u32 s{S_W}, 3")
    a.e("s_cbranch_scc1 L_a_fino_done")
    a.e("v_min_u32 v1, 47, v0")
    a.e("v_lshlrev_b32 v1, 2, v1")
    a.e("v_mov_b32 v2, 0")
    a.e("v_mov_b32 v3, 0")
    for g in range(2):
        for k in range(8):
            a.e(f"ds_read_b32 v{FR+k}, v1 offset:{L_GP+192*(8*g+k)}")
            a.e(f"ds_read_b32 v{FR+8+k}, v1 offset:{L_UP+192*(8*g+k)}")
        a.e("s_waitcnt lgkmcnt(0)")
        for k in range(8):
            a.e(f"v_add_f32 v2, v2, v{FR+k}")
            a.e(f"v_add_f32 v3, v3, v{FR+8+k}")
    bf16_round(a, 2, 2)
    bf16_round(a, 3, 3)
    a.e("v_mul_f32 v4, v2, v2")
    a.e(f"v_mov_b32 v5, {f32(0.044715)}")
    a.e("v_fma_f32 v4, v4, v5, 1.0")
    a.e("v_mul_f32 v4, v4, v2")
    a.e(f"v_mul_f32 v4, {f32(2*0.7978845608028654*LOG2E)}, v4")
    a.e("v_exp_f32 v4, v4")
    a.e("v_add_f32 v4, 1.0, v4")
    a.e("v_rcp_f32 v4, v4")
    a.e("v_fma_f32 v4, v4, -2.0, 1.0")
    a.e("v_add_f32 v4, 1.0, v4")
    a.e("v_mul_f32 v4, 0.5, v4")
    a.e("v_mul_f32 v4, v4, v2")
    bf16_round(a, 4, 4)
    a.e("v_mul_f32 v4, v4, v3")
    bf16_round(a, 4, 4)
    a.e(f"ds_write_b32 v1, v4 offset:{L_HID}")
    a.label("L_a_fino_done")
    a.e("s_nop 4")
    a.e("s_waitcnt lgkmcnt(0)")
    a.e("s_barrier")
    stamp()

    ACA = 16
    a.e(f"s_mul_i32 s{S_T}, s{S_W}, 24")
    a.e(f"v_mov_b32 v1, s{S_T}")
    for pr in range(6):
        a.e(f"ds_read_b32 v{26+pr}, v1 offset:{L_OBF+4*pr}")
    a.vm_wait(("wo", 11))
    a.e("s_waitcnt lgkmcnt(0)")
    for pr in range(6):
        xa4, xa1 = wo_regs(2 * pr)
        xb4, xb1 = wo_regs(2 * pr + 1)
        for c in range(5):
            A = xa4 + c if c < 4 else xa1
            B = xb4 + c if c < 4 else xb1
            t0, t1 = (4, 5) if c % 2 == 0 else (6, 7)
            a.e(f"v_perm_b32 v{t0}, v{B}, v{A}, s{S_SELLO}")
            a.e(f"v_perm_b32 v{t1}, v{B}, v{A}, s{S_SELHI}")
            first = (pr == 0)
            c0 = "0" if first else f"v{ACA+2*c}"
            c1 = "0" if first else f"v{ACA+2*c+1}"
            a.e(f"v_dot2_f32_bf16 v{ACA+2*c}, v{t0}, v{26+pr}, {c0}")
            a.e(f"v_dot2_f32_bf16 v{ACA+2*c+1}, v{t1}, v{26+pr}, {c1}")
    a.e(f"s_mul_i32 s{S_T}, s{S_W}, 5120")
    a.e("v_lshlrev_b32 v1, 5, v0")
    a.e(f"v_add_u32 v1, s{S_T}, v1")
    a.e("v_lshlrev_b32 v2, 3, v0")
    a.e(f"v_add_u32 v2, s{S_T}, v2")
    a.e(f"s_mul_i32 s{S_T}, s{S_W}, 12")
    a.e(f"v_mov_b32 v3, s{S_T}")
    for r in range(3):
        a.e(f"ds_read_b32 v{26+r}, v3 offset:{L_HID+4*r}")
    a.e(f"ds_write_b128 v1, {v(ACA,4)} offset:{L_RED}")
    a.e(f"ds_write_b128 v1, {v(ACA+4,4)} offset:{L_RED+16}")
    a.e(f"ds_write_b64 v2, {v(ACA+8,2)} offset:{L_RED+2048}")
    ACB = 80
    a.vm_wait(("wd", 2))
    a.e("s_waitcnt lgkmcnt(0)")
    for r in range(3):
        x4, x1 = wo_regs(12 + r)
        for c in range(5):
            w = x4 + c if c < 4 else x1
            a.e(f"v_lshlrev_b32 v4, 16, v{w}")
            a.e(f"v_and_b32 v5, 0xffff0000, v{w}")
            if r == 0:
                a.e(f"v_mul_f32 v{ACB+2*c}, v4, v{26+r}")
                a.e(f"v_mul_f32 v{ACB+2*c+1}, v5, v{26+r}")
            else:
                a.e(f"v_fmac_f32 v{ACB+2*c}, v4, v{26+r}")
                a.e(f"v_fmac_f32 v{ACB+2*c+1}, v5, v{26+r}")
    a.e(f"ds_write_b128 v1, {v(ACB,4)} offset:{L_RED+2560}")
    a.e(f"ds_write_b128 v1, {v(ACB+4,4)} offset:{L_RED+2560+16}")
    a.e(f"ds_write_b64 v2, {v(ACB+8,2)} offset:{L_RED+2560+2048}")
    a.e("s_waitcnt lgkmcnt(0)")
    a.e("s_barrier")
    stamp()

    POOL = 32
    a.e(f"s_cmp_ge_u32 s{S_W}, 10")
    a.e("s_cbranch_scc1 L_a_end")
    a.e(f"s_lshl_b32 s{S_T}, s{S_W}, 8")
    a.e("v_lshlrev_b32 v1, 2, v0")
    a.e(f"v_add_u32 v1, s{S_T}, v1")
    a.e(f"v_add_u32 v2, {L_RED}, v1")
    a.e(f"v_add_u32 v3, {L_RED+40960}, v1")
    for k in range(16):
        rr = 2 if k < 8 else 3
        kk = k % 8
        a.e(f"ds_read_b32 v{POOL+k}, v{rr} offset:{5120*kk}")
        a.e(f"ds_read_b32 v{POOL+16+k}, v{rr} offset:{5120*kk+2560}")
    a.e("s_waitcnt lgkmcnt(0)")
    for k in range(1, 16):
        a.e(f"v_add_f32 v{POOL}, v{POOL}, v{POOL+k}")
        a.e(f"v_add_f32 v{POOL+16}, v{POOL+16}, v{POOL+16+k}")
    a.e(f"s_mul_i32 s{S_T}, s2, 2560")
    a.e(f"v_add_u32 v1, s{S_T}, v1")
    a.vm(f"buffer_store_dword v{POOL}, v1, s[{SRD_WS}:{SRD_WS+3}], 0 offen offset:0", "st")
    a.e(f"v_add_u32 v2, {WS_PB}, v1")
    a.vm(f"buffer_store_dword v{POOL+16}, v2, s[{SRD_WS}:{SRD_WS+3}], 0 offen", "st")
    a.vm_wait_all()
    stamp()
    if STAMP:
        a.e(f"s_cmp_lg_u32 s{S_W}, 0")
        a.e("s_cbranch_scc1 L_a_end")
        a.e("s_and_b32 s98, s2, 63")
        a.e("s_cmp_lg_u32 s98, 0")
        a.e("s_cbranch_scc1 L_a_end")
        a.e("s_load_dwordx2 s[4:5], s[0:1], 88")
        a.e("s_waitcnt lgkmcnt(0)")
        srd(a, 4, 4, 5, None, 256)
        a.e("s_lshr_b32 s98, s2, 6")
        a.e("s_lshl_b32 s98, s98, 6")
        a.e("v_lshlrev_b32 v1, 2, v0")
        a.e("v_add_u32 v1, s98, v1")
        a.e("v_cmp_gt_u32 vcc, 16, v0")
        a.e("s_and_saveexec_b64 s[98:99], vcc")
        a.vm("buffer_store_dword v15, v1, s[4:7], 0 offen", "st")
        a.vm_wait_all()
    a.label("L_a_end")
    a.e("s_endpgm")
    return a.text()


def kernel_b():
    a = Asm()
    a.label("mixb_kernel")
    a.e("s_cmp_ge_u32 s2, 20")
    a.e("s_cbranch_scc1 L_b_end")
    a.e("s_load_dwordx2 s[4:5], s[0:1], 0")
    a.e("s_load_dwordx2 s[6:7], s[0:1], 72")
    a.e("s_load_dwordx2 s[8:9], s[0:1], 80")
    a.e("s_load_dwordx2 s[10:11], s[0:1], 96")
    a.e("v_lshrrev_b32 v1, 6, v0")
    a.e("v_and_b32 v0, 63, v0")
    a.e("v_readfirstlane_b32 s12, v1")
    a.e("s_lshl_b32 s13, s2, 2")
    a.e("s_add_u32 s12, s12, s13")
    a.e("s_mul_i32 s13, s12, 205")
    a.e("s_lshr_b32 s13, s13, 11")
    a.e("s_mul_i32 s14, s13, 10")
    a.e("s_sub_u32 s14, s12, s14")
    a.e("s_waitcnt lgkmcnt(0)")
    srd(a, 16, 4, 5, None, 10240)
    srd(a, 20, 6, 7, None, 1280)
    srd(a, 24, 8, 9, None, 10240)
    srd(a, 28, 10, 11, None, 8 << 20)
    a.e("s_mul_i32 s15, s13, 81920")
    a.e("s_lshl_b32 s32, s14, 8")
    a.e("s_add_u32 s15, s15, s32")
    a.e("v_lshlrev_b32 v1, 2, v0")
    a.e("v_add_u32 v1, s15, v1")
    a.e(f"v_add_u32 v2, {WS_PB}, v1")
    a.e("s_mov_b32 s33, 0")
    for h in range(32):
        a.vm(f"buffer_load_dword v{16+h}, v1, s[28:31], s33 offen", "pa")
        a.vm(f"buffer_load_dword v{48+h}, v2, s[28:31], s33 offen", "pb")
        if h < 31:
            a.e("s_add_u32 s33, s33, 2560")
    a.e("v_mul_u32_u24 v3, 20, v0")
    a.e("s_mul_i32 s34, s13, 1280")
    a.e("v_add_u32 v4, s34, v3")
    for j in range(5):
        a.vm(f"buffer_load_dword v{80+j}, v4, s[16:19], 0 offen offset:{4*j}", "gx")
        a.vm(f"buffer_load_dword v{86+j}, v3, s[20:23], 0 offen offset:{4*j}", "gx")
    a.e("v_mov_b32 v5, 0")
    a.vm_wait("gx")
    for j in range(5):
        for half in range(2):
            if half == 0:
                a.e(f"v_lshlrev_b32 v6, 16, v{80+j}")
                a.e(f"v_lshlrev_b32 v7, 16, v{86+j}")
            else:
                a.e(f"v_and_b32 v6, 0xffff0000, v{80+j}")
                a.e(f"v_and_b32 v7, 0xffff0000, v{86+j}")
            a.e("v_mul_f32 v6, v6, v7")
            bf16_round(a, 6, 6)
            a.e("v_add_f32 v5, v5, v6")
    for r in (8, 4, 2, 1):
        a.e(f"v_add_f32_dpp v5, v5, v5 row_ror:{r} row_mask:0xf bank_mask:0xf")
    a.e("s_nop 1")
    for k in range(4):
        a.e(f"v_readlane_b32 s{36+k}, v5, {16*k}")
    a.e("s_nop 1")
    a.e("v_mov_b32 v5, s36")
    for k in range(1, 4):
        a.e(f"v_add_f32 v5, s{36+k}, v5")
    bf16_round(a, 5, 5)
    a.e(f"v_mul_f32 v5, {f32(-LOG2E)}, v5")
    a.e("v_exp_f32 v5, v5")
    a.e("v_add_f32 v5, 1.0, v5")
    a.e("v_rcp_f32 v5, v5")
    bf16_round(a, 5, 5)
    a.e("v_sub_f32 v6, 1.0, v5")
    bf16_round(a, 6, 6)
    a.vm_wait_all()
    for h in range(1, 32):
        a.e(f"v_add_f32 v16, v16, v{16+h}")
        a.e(f"v_add_f32 v48, v48, v{48+h}")
    bf16_round(a, 16, 16)
    bf16_round(a, 48, 48)
    a.e("v_mul_f32 v16, v5, v16")
    bf16_round(a, 16, 16)
    a.e("v_mul_f32 v48, v6, v48")
    bf16_round(a, 48, 48)
    a.e("v_add_f32 v16, v16, v48")
    a.e("v_cvt_pk_bf16_f32 v16, v16, v16")
    a.e("s_lshl_b32 s32, s14, 7")
    a.e("s_add_u32 s34, s34, s32")
    a.e("v_lshlrev_b32 v1, 1, v0")
    a.e("v_add_u32 v1, s34, v1")
    a.vm("buffer_store_short v16, v1, s[24:27], 0 offen", "st")
    a.vm_wait_all()
    a.label("L_b_end")
    a.e("s_endpgm")
    return a.text()


def main():
    hdr = open(f"cdna_kernels/{NAME}.s.ref").read().split("; Override launch geometry")[0]
    out = hdr
    out += f"; @launch kernel={NAME}_kernel grid=(256,1,1) block=(1024,1,1) lds={LDS_BYTES}\n"
    out += f"; @launch kernel=mixb_kernel grid=(20,1,1) block=(256,1,1) lds=0\n"
    out += '.amdgcn_target "amdgcn-amd-amdhsa--gfx950"\n.text\n'
    out += f".globl {NAME}_kernel\n.p2align 8\n.type {NAME}_kernel,@function\n"
    out += kernel_a()
    out += ".globl mixb_kernel\n.p2align 8\n.type mixb_kernel,@function\n"
    out += kernel_b()
    out += '.section .rodata,"a"\n'
    for name, vg, sg in ((NAME + "_kernel", 128, 100), ("mixb_kernel", 96, 48)):
        out += f""".p2align 6
.amdhsa_kernel {name}
  .amdhsa_next_free_vgpr {vg}
  .amdhsa_next_free_sgpr {sg}
  .amdhsa_accum_offset {vg}
  .amdhsa_group_segment_fixed_size 0
  .amdhsa_kernarg_size 104
  .amdhsa_user_sgpr_count 2
  .amdhsa_user_sgpr_kernarg_segment_ptr 1
  .amdhsa_system_sgpr_workgroup_id_x 1
.end_amdhsa_kernel
"""
    dst = f"cdna_kernels/{NAME}.s"
    if "--out" in sys.argv:
        dst = sys.argv[sys.argv.index("--out") + 1]
    open(dst, "w").write(out)
    print("wrote", dst, len(out), "bytes")


if __name__ == "__main__":
    main()
```
